```python
import torch

def _softmax(x, axis=-1):
    return torch.softmax(x, dim=axis)

def _gelu(x):
    return torch.nn.functional.gelu(x, approximate='tanh')

def _silu(x):
    return torch.nn.functional.silu(x)

def _sigmoid(x):
    return torch.sigmoid(x)

def _layernorm(x, axis=-1, eps=1e-05):
    m = x.mean(dim=axis, keepdim=True)
    v = x.var(dim=axis, keepdim=True, unbiased=False)
    return (x - m) / torch.sqrt(v + eps)

def _scatter_add(tgt, idx, src, axis=0):
    return tgt.clone().index_add_(axis, idx, src)

def _segment_sum(src, seg, n):
    out = torch.zeros((n,) + src.shape[1:], dtype=src.dtype)
    return out.index_add_(0, seg, src)

def _pad(x, pw):
    flat = tuple((v for pair in reversed(pw) for v in pair))
    return torch.nn.functional.pad(x, flat)
kernel_name = 'adaLN_cond__linear_kernel_hedgehog__geglu_ffn__prompt'

def setup_inputs():

    _w = lambda a: (lambda t: t.to(torch.bfloat16) if t.is_floating_point() else t)(torch.as_tensor(a))

    def _A_setup():
        B, S, D, H = (1, 2048, 448, 16)
        Dh = D // H
        return {'x': _w((lambda *s: torch.randn(*s, dtype=torch.bfloat16) * 0.05)(B, S, D)), 'wqkv': _w((lambda *s: torch.randn(*s, dtype=torch.bfloat16) * 0.4)(D, 3 * D)), 'w_phi': _w((lambda *s: torch.randn(*s, dtype=torch.bfloat16) * 0.4)(H, Dh, Dh) * Dh ** (-0.5)), 'wo': _w((lambda *s: torch.randn(*s, dtype=torch.bfloat16) * 0.05)(D, D))}
    _A_in = _A_setup()

    def _B_setup():
        B, S, D, F = (1, 2048, 448, 1792)
        return {'x': _w((lambda *s: torch.randn(*s, dtype=torch.bfloat16) * 0.05)(B, S, D)), 'w_gate': _w((lambda *s: torch.randn(*s, dtype=torch.bfloat16) * 0.05)(D, F)), 'w_up': _w((lambda *s: torch.randn(*s, dtype=torch.bfloat16) * 0.05)(D, F)), 'w_down': _w((lambda *s: torch.randn(*s, dtype=torch.bfloat16) * 0.05)(F, D))}
    _B_in = _B_setup()
    return {'A_x': _A_in['x'], 'A_wqkv': _A_in['wqkv'], 'A_w_phi': _A_in['w_phi'], 'A_wo': _A_in['wo'], 'B_x': _B_in['x'], 'B_w_gate': _B_in['w_gate'], 'B_w_up': _B_in['w_up'], 'B_w_down': _B_in['w_down'], 'c': _w((lambda *s: torch.randn(*s, dtype=torch.bfloat16) * 0.1)(1, 448) * 8.0), 'w_mod': _w((lambda *s: torch.randn(*s, dtype=torch.bfloat16) * 0.1)(448, 6 * 448) * 448 ** (-0.5) * 8.0)}

def reference(A_x, A_wqkv, A_w_phi, A_wo, B_x, B_w_gate, B_w_up, B_w_down, c, w_mod):

    def _A_ref(x, wqkv, w_phi, wo):
        B, S, D = x.shape
        H = 16
        Dh = D // H
        qkv = (lambda x, *d: x.permute(*d))((x @ wqkv).reshape(B, S, 3, H, Dh), 2, 0, 3, 1, 4)
        q, k, v = (qkv[0], qkv[1], qkv[2])
        pq = torch.einsum('bhsd,hdf->bhsf', q, w_phi)
        pk = torch.einsum('bhsd,hdf->bhsf', k, w_phi)
        phi_q = torch.concatenate([_softmax(pq, axis=-1), _softmax(-pq, axis=-1)], axis=-1)
        phi_k = torch.concatenate([_softmax(pk, axis=-1), _softmax(-pk, axis=-1)], axis=-1)
        kv = torch.einsum('bhsf,bhsd->bhfd', phi_k, v)
        z = torch.einsum('bhsf->bhf', phi_k)
        num = torch.einsum('bhqf,bhfd->bhqd', phi_q, kv)
        den = torch.einsum('bhqf,bhf->bhq', phi_q, z)[..., None] + 1e-06
        o = num / den
        return (lambda x, *d: x.permute(*d))(o, 0, 2, 1, 3).reshape(B, S, D) @ wo

    def _B_ref(x, w_gate, w_up, w_down):
        return _gelu(x @ w_gate) * (x @ w_up) @ w_down
    x = A_x
    mod = (_silu(c) @ w_mod).reshape(c.shape[0], 6, 1, -1)
    sa, ca, ga, sb, cb, gb = (mod[:, 0].clone(), mod[:, 1].clone(), mod[:, 2].clone(), mod[:, 3].clone(), mod[:, 4].clone(), mod[:, 5].clone())
    h = _layernorm(x, axis=-1) * (1 + ca) + sa
    x = x + ga * _A_ref(h, A_wqkv, A_w_phi, A_wo)
    h = _layernorm(x, axis=-1) * (1 + cb) + sb
    x = x + gb * _B_ref(h, B_w_gate, B_w_up, B_w_down)
    return x
```

```python
import re

REG_RE = re.compile(r'^(-|\|)?(abs\()?([vas])(\d+|\[(\d+):(\d+)\])\)?\|?$')


def v(i, n=1):
    return f'v{i}' if n == 1 else f'v[{i}:{i + n - 1}]'


def a(i, n=1):
    return f'a{i}' if n == 1 else f'a[{i}:{i + n - 1}]'


def s(i, n=1):
    return f's{i}' if n == 1 else f's[{i}:{i + n - 1}]'


def regs_of(tok):
    tok = str(tok).strip()
    if tok in ('vcc',):
        return {('x', 'vcc')}
    if tok in ('vcc_lo', 'vcc_hi'):
        return {('x', 'vcc')}
    if tok in ('exec', 'exec_lo', 'exec_hi'):
        return {('x', 'exec')}
    if tok == 'm0':
        return {('x', 'm0')}
    if tok == 'scc':
        return {('x', 'scc')}
    m = REG_RE.match(tok)
    if not m:
        return set()
    c = m.group(3)
    if m.group(5) is not None:
        lo, hi = int(m.group(5)), int(m.group(6))
    else:
        lo = hi = int(m.group(4))
    return {(c, i) for i in range(lo, hi + 1)}


TRANS = ('v_exp_', 'v_log_', 'v_rcp_', 'v_rsq_', 'v_sqrt_', 'v_sin_', 'v_cos_')


class Ins:
    __slots__ = ('op', 'ops', 'mods', 'cls', 'rd', 'wr', 'passes', 'srcc', 'srcab', 'tag', 'text', 'wide', 'dpp',
                 'opsel_dst', 'comment', 'lds_dma')

    def __init__(self, op, ops, mods):
        self.op, self.ops, self.mods = op, [str(o) for o in ops], mods
        self.tag = None
        self.passes = 0
        self.srcc = set()
        self.srcab = set()
        self.wide = set()
        self.lds_dma = False
        self.dpp = ('dpp' in op) or any(x in mods for x in ('row_', 'quad_perm', 'wave_'))
        self.opsel_dst = False
        self.comment = ''
        o = self.ops
        R = [regs_of(x) for x in o]
        U = lambda xs: set().union(*xs) if xs else set()
        rd, wr = set(), set()
        if op.startswith('v_mfma'):
            self.cls = 'mfma'
            wr = R[0]
            self.srcab = R[1] | R[2]
            self.srcc = R[3]
            rd = self.srcab | self.srcc
            if '32x32x16' in op or '32x32x8' in op:
                self.passes = 8
            elif '16x16x32' in op or '16x16x16' in op:
                self.passes = 4
            else:
                raise ValueError(op)
        elif op.startswith('v_'):
            self.cls = 'valu'
            if op.startswith('v_cmpx'):
                wr = R[0] | {('x', 'exec')}
                rd = U(R[1:])
            elif op.startswith('v_cmp'):
                wr = R[0]
                rd = U(R[1:])
            elif op.startswith('v_permlane') and 'swap' in op:
                wr = R[0] | R[1]
                rd = R[0] | R[1]
            elif op.startswith(('v_add_co', 'v_sub_co', 'v_subrev_co', 'v_addc_co', 'v_subb_co', 'v_div_scale',
                                'v_mad_u64_u32')):
                wr = R[0] | R[1]
                rd = U(R[2:])
            elif op == 'v_nop':
                pass
            else:
                wr = R[0]
                rd = U(R[1:])
                if op.startswith(('v_fmac', 'v_dot2c', 'v_dot4c', 'v_writelane', 'v_fma_mixlo', 'v_fma_mixhi',
                                  'v_pk_fmac')) or self.dpp or 'sdwa' in op or 'dst_sel' in mods:
                    rd |= R[0]
                if op.startswith(('v_fma_mixlo', 'v_fma_mixhi')) or 'dst_sel' in mods:
                    self.opsel_dst = True
        elif op.startswith(('buffer_', 'global_')):
            self.cls = 'vmem'
            is_lds = (' lds' in (' ' + mods)) or ('_lds_' in op)
            if op.startswith(('buffer_inv', 'buffer_wbl2')):
                pass
            elif is_lds:
                self.lds_dma = True
                rd = U(R) | {('x', 'm0')}
            elif '_load' in op:
                wr = R[0]
                rd = U(R[1:])
            elif '_atomic' in op:
                rd = U(R)
                if 'sc0' in mods.split():
                    if op.startswith('global_'):
                        wr = R[0]
                        rd = U(R[1:])
                    else:
                        wr = R[0]
            else:
                rd = U(R)
                if op.endswith(('x3', 'x4')):
                    self.wide = R[0] if op.startswith('buffer_') else R[1]
        elif op.startswith('ds_'):
            self.cls = 'ds'
            if op.startswith(('ds_read', 'ds_bpermute', 'ds_permute', 'ds_swizzle')) or '_rtn' in op:
                wr = R[0]
                rd = U(R[1:])
            else:
                rd = U(R)
            if 'addtid' in op:
                rd |= {('x', 'm0')}
        elif op.startswith(('s_load', 's_buffer_load', 's_memtime', 's_memrealtime')):
            self.cls = 'smem'
            wr = R[0]
            rd = U(R[1:])
        elif op.startswith('s_'):
            self.cls = 'salu'
            if op.startswith(('s_cmp', 's_cbranch', 's_branch', 's_waitcnt', 's_nop', 's_barrier', 's_endpgm',
                              's_setprio', 's_sleep', 's_bitcmp', 's_setreg', 's_sendmsg')):
                rd = U(R)
            else:
                wr = R[0] if R else set()
                rd = U(R[1:])
                if 'saveexec' in op:
                    wr = wr | {('x', 'exec')}
                if op.startswith(('s_addk', 's_mulk')):
                    rd |= R[0]
        else:
            raise ValueError('unknown op ' + op)
        self.rd, self.wr = rd, wr

    def states(self):
        if self.op == 's_nop':
            return int(self.ops[0], 0) + 1
        return 1

    def render(self):
        t = self.op
        if self.ops:
            t += ' ' + ', '.join(self.ops)
        if self.mods:
            t += ' ' + self.mods
        if self.comment:
            t += ' ; ' + self.comment
        return '  ' + t


def need(p, c):
    n = 0
    pv, cv = p.cls == 'valu', c.cls == 'valu'
    vg = lambda S: {r for r in S if r[0] in 'va'}
    sg = lambda S: {r for r in S if r[0] == 's' or r == ('x', 'vcc')}
    if p.cls == 'mfma':
        big = p.passes == 8
        if c.cls == 'mfma':
            if p.wr & c.srcab:
                n = max(n, 12 if big else 8)
            if p.wr & c.srcc:
                if not (p.wr == c.srcc and p.passes == c.passes):
                    n = max(n, 10 if big else 6)
            elif p.wr & c.wr:
                n = max(n, 10 if big else 6)
        elif c.cls in ('valu', 'vmem', 'ds'):
            if p.wr & (c.rd | c.wr):
                n = max(n, 12 if big else 8)
            if cv and (p.srcc & c.wr):
                n = max(n, 7 if big else 3)
    if pv:
        isdot = p.op.startswith('v_dot')
        w = vg(p.wr)
        if c.cls == 'mfma' and (w & c.rd):
            n = max(n, 3 if isdot else 2)
        if c.cls == 'mfma' and ('x', 'exec') in p.wr:
            n = max(n, 4)
        if isdot and c.cls in ('valu', 'vmem', 'ds') and (w & (c.rd | c.wr)):
            if c.op == p.op:
                ab = set()
                for x in c.ops[1:3]:
                    ab |= regs_of(x)
                if w & ab:
                    n = max(n, 3)
            else:
                n = max(n, 3)
        if cv:
            if c.dpp and (w & c.rd):
                n = max(n, 2)
            if c.op.startswith('v_permlane') and (w & c.rd):
                n = max(n, 2)
            if c.op.startswith(('v_readlane', 'v_readfirstlane')) and (w & c.rd):
                n = max(n, 1)
            if sg(p.wr) & c.rd:
                n = max(n, 4 if c.op.startswith(('v_readlane', 'v_writelane', 'v_div_fmas')) else 2)
            if ('x', 'exec') in p.wr:
                if c.dpp:
                    n = max(n, 5)
                if c.op.startswith(('v_readlane', 'v_readfirstlane', 'v_writelane', 'v_permlane')):
                    n = max(n, 4)
                if ('x', 'exec') in c.rd:
                    n = max(n, 2)
            if p.opsel_dst and (w & (c.rd | c.wr)):
                n = max(n, 1)
        if p.op.startswith(TRANS) and (w & c.rd) and not c.op.startswith(TRANS):
            n = max(n, 1)
        if c.cls == 'vmem' and (sg(p.wr) & c.rd):
            n = max(n, 5)
    if p.wide and (p.wide & c.wr):
        n = max(n, 2 if cv else 1)
    if p.cls == 'salu' and ('x', 'm0') in p.wr and ('x', 'm0') in c.rd and c.cls in ('vmem', 'ds'):
        n = max(n, 1)
    return n


class Kernel:
    def __init__(self, name):
        self.name = name
        self.items = []
        self.vmq = []
        self.lq = []
        self.smem = []
        self.hist = []
        self.pos = 0
        self.maxv = 0
        self.maxa = -1
        self.maxs = 0
        self.nlabel = 0
        self.auto = True
        self.nops = 0

    def _push(self, ins):
        self.items.append(ins)
        self.hist.append((ins, self.pos))
        self.pos += ins.states()
        if len(self.hist) > 24:
            self.hist.pop(0)

    def _pad(self, n):
        while n > 0:
            m = min(n, 16)
            self._push(Ins('s_nop', [str(m - 1)], ''))
            self.nops += m
            n -= m

    def _waits_for(self, ins):
        touched = ins.rd | ins.wr
        vm = lg = None
        for i, o in enumerate(self.vmq):
            if o.wr & touched:
                vm = len(self.vmq) - 1 - i
        for i, o in enumerate(self.lq):
            if o.wr & touched:
                lg = len(self.lq) - 1 - i
        for o in self.smem:
            if o.wr & touched:
                lg = 0
        if lg is not None and self.smem:
            lg = 0
        return vm, lg

    def waitcnt(self, vm=None, lg=None):
        parts = []
        if vm is not None and vm < len(self.vmq):
            vm = min(vm, 63)
            parts.append(f'vmcnt({vm})')
            self.vmq = self.vmq[len(self.vmq) - vm:] if vm else []
        if lg is not None and (lg < len(self.lq) or (lg == 0 and self.smem)):
            if self.smem:
                lg = 0
            lg = min(lg, 15)
            parts.append(f'lgkmcnt({lg})')
            self.lq = self.lq[len(self.lq) - lg:] if lg else []
            if lg == 0:
                self.smem = []
        if parts:
            self._push(Ins('s_waitcnt', [' '.join(parts)], ''))

    def i(self, op, *ops, m='', tag=None, c=''):
        ins = Ins(op, ops, m)
        ins.tag = tag
        ins.comment = c
        for r in ins.rd | ins.wr:
            if r[0] == 'v':
                self.maxv = max(self.maxv, r[1])
            elif r[0] == 'a':
                self.maxa = max(self.maxa, r[1])
            elif r[0] == 's':
                self.maxs = max(self.maxs, r[1])
        if self.auto:
            vm, lg = self._waits_for(ins)
            self.waitcnt(vm, lg)
        req = 0
        for p, pp in self.hist:
            n = need(p, ins)
            if n:
                dist = self.pos - (pp + p.states())
                req = max(req, n - dist)
        self._pad(req)
        self._push(ins)
        if ins.cls == 'vmem':
            self.vmq.append(ins)
            assert len(self.vmq) <= 63 or True
        elif ins.cls == 'ds':
            self.lq.append(ins)
        elif ins.cls == 'smem':
            self.smem.append(ins)
        return ins

    def wait_tag(self, tag, extra_lg=None):
        vm = lg = None
        for i, o in enumerate(self.vmq):
            if o.tag == tag:
                vm = len(self.vmq) - 1 - i
        for i, o in enumerate(self.lq):
            if o.tag == tag:
                lg = len(self.lq) - 1 - i
        if extra_lg is not None:
            lg = extra_lg if lg is None else min(lg, extra_lg)
        self.waitcnt(vm, lg)

    def drain(self, vm=True, lg=True):
        self.waitcnt(0 if vm else None, 0 if lg else None)

    def flush_hazards(self):
        req = 0
        for p, pp in self.hist:
            n = 0
            if p.cls == 'mfma':
                n = 12 if p.passes == 8 else 8
            elif p.cls == 'valu':
                n = 5 if any(r[0] in 'sx' for r in p.wr) else (3 if p.op.startswith('v_dot') else 2)
            elif p.wide:
                n = 2
            elif p.cls == 'salu' and ('x', 'm0') in p.wr:
                n = 1
            if n:
                req = max(req, n - 1 - (self.pos - (pp + p.states())))
        self._pad(req)

    def branch(self, op, label):
        self.flush_hazards()
        self._push(Ins(op, [label], ''))

    def label(self, name):
        self.items.append(name + ':')

    def newlabel(self, base='L'):
        self.nlabel += 1
        return f'.{self.name}_{base}{self.nlabel}'

    def barrier(self, vm=None, lg=0):
        self.waitcnt(vm, lg)
        self._push(Ins('s_barrier', [], ''))

    def comment(self, t):
        self.items.append('  ; ' + t)

    def end(self):
        self._push(Ins('s_endpgm', [], ''))
        self.vmq, self.lq, self.smem, self.hist = [], [], [], []

    def state(self):
        return (list(self.vmq), list(self.lq), list(self.smem))

    def set_state(self, st):
        self.vmq, self.lq, self.smem = list(st[0]), list(st[1]), list(st[2])
        self.hist = []

    def text(self):
        out = [f'.globl {self.name}', '.p2align 8', f'.type {self.name},@function', f'{self.name}:']
        for it in self.items:
            out.append(it if isinstance(it, str) else it.render())
        return '\n'.join(out) + '\n'

    def descriptor(self):
        nv = self.maxv + 1
        acc = (nv + 3) // 4 * 4
        tot = acc + self.maxa + 1 if self.maxa >= 0 else nv
        assert acc <= 256 and tot <= 512, (self.name, acc, tot)
        return (f'.p2align 6\n.amdhsa_kernel {self.name}\n  .amdhsa_next_free_vgpr {tot}\n'
                f'  .amdhsa_next_free_sgpr {max(self.maxs + 1, 16)}\n  .amdhsa_accum_offset {acc}\n'
                '  .amdhsa_group_segment_fixed_size 0\n  .amdhsa_kernarg_size 104\n'
                '  .amdhsa_user_sgpr_count 2\n  .amdhsa_user_sgpr_kernarg_segment_ptr 1\n'
                '  .amdhsa_system_sgpr_workgroup_id_x 1\n'
                '  .amdhsa_float_denorm_mode_32 3\n  .amdhsa_float_denorm_mode_16_64 3\n'
                '.end_amdhsa_kernel\n')


def module(header_lines, launches, kernels):
    out = list(header_lines)
    if len(launches) == 1 and len(kernels) == 1 and not header_lines_force_list(header_lines):
        n, g, b, l = launches[0]
        out.append(f'; @launch grid=({g},1,1) block=({b},1,1) lds={l}')
    else:
        for n, g, b, l in launches:
            out.append(f'; @launch kernel={n} grid=({g},1,1) block=({b},1,1) lds={l}')
    out.append('.amdgcn_target "amdgcn-amd-amdhsa--gfx950"')
    out.append('.text')
    t = '\n'.join(out) + '\n'
    for k in kernels:
        t += k.text()
    t += '.Lcode_end:\n'
    t += '.section .rodata,"a"\n'
    for k in kernels:
        t += k.descriptor()
    return t


def header_lines_force_list(h):
    return any('FORCE_LIST' in x for x in h)
```

```python
from asmgen import *
import layout as L

NAME = 'adaLN_cond__linear_kernel_hedgehog__geglu_ffn__prompt'
PTR = dict(x=4, wqkv=6, wphi=8, wo=10, wg=14, wu=16, wd=18, c=20, wmod=22, out=24, dbg=26, ws=28)
SIZE = dict(x=2048 * 896, wqkv=448 * 2688, wphi=16 * 1568, wo=448 * 896, wg=448 * 3584, wu=448 * 3584,
            wd=1792 * 896, c=896, wmod=448 * 5376, out=2048 * 896, dbg=256, ws=L.WS_SIZE)
LOG2E = 0x3fb8aa3b


def f32bits(x):
    import struct
    return '0x%08x' % struct.unpack('<I', struct.pack('<f', x))[0]


def load_args(k):
    k.i('s_load_dwordx16', s(4, 16), s(0, 2), 0)
    k.i('s_load_dwordx8', s(20, 8), s(0, 2), 64)
    k.i('s_load_dwordx2', s(28, 2), s(0, 2), 96)


def srd(k, dst, name):
    p = PTR[name]
    k.i('s_mov_b32', s(dst), s(p))
    k.i('s_mov_b32', s(dst + 1), s(p + 1))
    k.i('s_mov_b32', s(dst + 2), hex(SIZE[name]))
    k.i('s_mov_b32', s(dst + 3), '0x00020000')


def allreduce_rows(k, op, x, t):
    k.i('v_mov_b32', v(t), v(x))
    k.i('v_permlane32_swap_b32', v(x), v(t))
    k.i(op, v(x), v(x), v(t))
    k.i('v_mov_b32', v(t), v(x))
    k.i('v_permlane16_swap_b32', v(x), v(t))
    k.i(op, v(x), v(x), v(t))


import os
PROF = int(os.environ.get('PROF', '0'))
TS = 0x1800000
ST0 = 70


def stamp(k, n):
    if PROF:
        assert n < 16
        k.i('s_memtime' if PROF == 2 else 's_memrealtime', s(ST0 + 2 * n, 2))
        k.nst = max(getattr(k, 'nst', 0), n + 1)


def endp(k, kid, ws=32):
    if PROF:
        stamp(k, 15)
        k.drain()
        k.i('s_lshl_b32', s(4), s(2), 3)
        k.i('s_add_u32', s(4), s(4), s(3))
        k.i('s_lshl_b32', s(4), s(4), 6)
        k.i('s_add_u32', s(4), s(4), hex(TS + kid * 512 * 8 * 64))
        k.i('s_mov_b64', 'exec', 1)
        k.i('v_mov_b32', v(1), 0)
        for n in range(16):
            k.i('v_mov_b32', v(0), s(ST0 + 2 * n))
            k.i('buffer_store_dword', v(0), v(1), s(ws, 4), s(4), m=f'offen offset:{4 * n}')
    k.end()


def prof_init(k):
    if PROF:
        for n in range(16):
            k.i('s_mov_b32', s(ST0 + 2 * n), 0)
        stamp(k, 0)


def code_prefetch(k, target, chunks, vt, st, lane=1, limit='.Lcode_end'):
    pc = k.newlabel('pc')
    k.i('s_getpc_b64', s(st, 2))
    k.label(pc)
    tgt = target or pc
    if target:
        k.i('s_add_u32', s(st), s(st), f'{target}-{pc}')
        k.i('s_addc_u32', s(st + 1), s(st + 1), 0)
    for n, c in enumerate(chunks):
        k.i('v_lshlrev_b32', v(vt), 6, v(lane))
        if isinstance(c, int):
            if c:
                k.i('v_add_u32', v(vt), 4096 * c, v(vt))
        else:
            k.i('s_lshl_b32', s(st + 2), c[0], 12)
            if c[1]:
                k.i('s_add_u32', s(st + 2), s(st + 2), 4096 * c[1])
            k.i('v_add_u32', v(vt), s(st + 2), v(vt))
        k.i('v_min_u32', v(vt), f'{limit}-{tgt}-4', v(vt))
        k.i('v_mov_b32', v(vt + 1), s(st + 1))
        k.i('v_add_co_u32', v(vt), 'vcc', s(st), v(vt))
        k.i('v_addc_co_u32', v(vt + 1), 'vcc', 0, v(vt + 1), 'vcc')
        k.i('global_load_dword', v(vt + 2 + n), v(vt, 2), 'off')
```

```python
S, D, H, DH, F = 2048, 448, 16, 28, 1792
MODF = 0x000000
MODH = 0x003000
FLG  = 0x010000
FA   = FLG
FB   = FLG + 64 * 128
FC   = FLG + 128 * 128
FD   = FLG + 192 * 128
WPHI = 0x020000
STATS = 0x040000
KVP  = 0x080000
XN   = 0x200000
WQKV = 0x400000
WO   = 0x580000
WGU  = 0x600000
WD   = 0xA00000
OF   = 0xC00000
X1F  = 0xE00000
AF   = 0x1000000
WS_USED = 0x1700000
WS_SIZE = 268435456
```

```python
import sys, importlib
sys.path.insert(0, 'work2')
from common import *
mods = [importlib.import_module(n) for n in ('k0', 'km')]
ref = open('cdna_kernels/' + NAME + '.s.ref').read().split('\n')
hdr = [l for l in ref if l.startswith(';') and '@launch' not in l and 'Override' not in l and 'grid=ceil' not in l]
ks, ls = [], []
for m in mods:
    k, l = m.build()
    ks.append(k); ls.append(l)
    print(k.name, 'instrs', sum(1 for i in k.items if not isinstance(i, str)), 'nops', k.nops, 'maxv', k.maxv, 'maxa', k.maxa, 'maxs', k.maxs, 'launch', l, file=sys.stderr)
out = sys.argv[1] if len(sys.argv) > 1 else 'cdna_kernels/' + NAME + '.s'
open(out, 'w').write(module(hdr, ls, ks))
```
